```python
import torch

def _softmax(x, axis=-1):
    return torch.softmax(x, dim=axis)
def _gelu(x):
    return torch.nn.functional.gelu(x, approximate="tanh")
def _silu(x):
    return torch.nn.functional.silu(x)
def _sigmoid(x):
    return torch.sigmoid(x)
def _layernorm(x, axis=-1, eps=1e-5):
    m = x.mean(dim=axis, keepdim=True)
    v = x.var(dim=axis, keepdim=True, unbiased=False)
    return (x - m) / torch.sqrt(v + eps)
def _scatter_add(tgt, idx, src, axis=0):
    return tgt.clone().index_add_(axis, idx, src)
def _segment_sum(src, seg, n):
    out = torch.zeros((n,) + src.shape[1:], dtype=src.dtype)
    return out.index_add_(0, seg, src)
def _pad(x, pw):
    flat = tuple(v for pair in reversed(pw) for v in pair)
    return torch.nn.functional.pad(x, flat)

kernel_name = 'concat_heads__mha_block_cached__mha_block_cached__near_ridge'

def setup_inputs():

    _w = (lambda a: (lambda t: t.to(torch.bfloat16) if t.is_floating_point() else t)(torch.as_tensor(a)))
    def _A_setup():
        B, Sq, D = 8, 128, 640
        H, Sk, Dh = 32, 512, 192
        return {
            "x": _w((lambda *s: torch.randn(*s, dtype=torch.bfloat16) * 0.8)(B, Sq, D)),
            "k_cache": _w((lambda *s: torch.randn(*s, dtype=torch.bfloat16) * 0.8)(B, H, Sk, Dh)),
            "v_cache": _w((lambda *s: torch.randn(*s, dtype=torch.bfloat16) * 0.05)(B, H, Sk, Dh)),
            "wq": _w((lambda *s: torch.randn(*s, dtype=torch.bfloat16) * 0.8)(D, H * Dh) * (D ** -0.5)),
            "wo": _w((lambda *s: torch.randn(*s, dtype=torch.bfloat16) * 0.05)(H * Dh, D) * ((H * Dh) ** -0.5)),
        }
    _A_in = _A_setup()

    def _B_setup():
        B, Sq, D = 8, 128, 640
        H, Sk, Dh = 32, 512, 192
        return {
            "x": _w((lambda *s: torch.randn(*s, dtype=torch.bfloat16) * 0.8)(B, Sq, D)),
            "k_cache": _w((lambda *s: torch.randn(*s, dtype=torch.bfloat16) * 0.8)(B, H, Sk, Dh)),
            "v_cache": _w((lambda *s: torch.randn(*s, dtype=torch.bfloat16) * 0.05)(B, H, Sk, Dh)),
            "wq": _w((lambda *s: torch.randn(*s, dtype=torch.bfloat16) * 0.8)(D, H * Dh) * (D ** -0.5)),
            "wo": _w((lambda *s: torch.randn(*s, dtype=torch.bfloat16) * 0.05)(H * Dh, D) * ((H * Dh) ** -0.5)),
        }
    _B_in = _B_setup()

    return {
        "A_x": _A_in["x"],
        "A_k_cache": _A_in["k_cache"],
        "A_v_cache": _A_in["v_cache"],
        "A_wq": _A_in["wq"],
        "A_wo": _A_in["wo"],
        "B_x": _B_in["x"],
        "B_k_cache": _B_in["k_cache"],
        "B_v_cache": _B_in["v_cache"],
        "B_wq": _B_in["wq"],
        "B_wo": _B_in["wo"],
    }

def reference(A_x, A_k_cache, A_v_cache, A_wq, A_wo, B_x, B_k_cache, B_v_cache, B_wq, B_wo):
    def _A_ref(x, k_cache, v_cache, wq, wo):
        B, Sq, D = x.shape
        H, Dh = 32, 192
        q = (lambda x, *d: x.permute(*d))((x @ wq).reshape(B, Sq, H, Dh), 0, 2, 1, 3)
        scores = torch.einsum("bhqd,bhkd->bhqk", q, k_cache) * (Dh ** -0.5)
        p = _softmax(scores, axis=-1)
        o = torch.einsum("bhqk,bhkd->bhqd", p, v_cache)
        return (lambda x, *d: x.permute(*d))(o, 0, 2, 1, 3).reshape(B, Sq, H * Dh) @ wo

    def _B_ref(x, k_cache, v_cache, wq, wo):
        B, Sq, D = x.shape
        H, Dh = 32, 192
        q = (lambda x, *d: x.permute(*d))((x @ wq).reshape(B, Sq, H, Dh), 0, 2, 1, 3)
        scores = torch.einsum("bhqd,bhkd->bhqk", q, k_cache) * (Dh ** -0.5)
        p = _softmax(scores, axis=-1)
        o = torch.einsum("bhqk,bhkd->bhqd", p, v_cache)
        return (lambda x, *d: x.permute(*d))(o, 0, 2, 1, 3).reshape(B, Sq, H * Dh) @ wo

    a = _A_ref(A_x, A_k_cache, A_v_cache, A_wq, A_wo)
    b = _B_ref(B_x, B_k_cache, B_v_cache, B_wq, B_wo)
    return torch.concatenate([a, b], axis=-1)
```

```python
import sys, re
NAME = "concat_heads__mha_block_cached__mha_block_cached__near_ridge"
OUT = "cdna_kernels/%s.s" % NAME
REF = OUT + ".ref"
OPT = dict(nt_kv=0, prio=0)
for a in sys.argv[1:]:
    if "=" in a:
        k, v = a.split("=")
        if k == "out":
            OUT = v
        else:
            OPT[k] = int(v)

L = []
def e(s):
    L.append("    " + s)
def lab(s):
    L.append(s + ":")
def vr(a, n=1):
    return "v%d" % a if n == 1 else "v[%d:%d]" % (a, a + n - 1)
def sr(a, n=1):
    return "s%d" % a if n == 1 else "s[%d:%d]" % (a, a + n - 1)

MFMA = "v_mfma_f32_32x32x16_bf16"

class DS:
    def __init__(self):
        self.n = 0
        self.done = 0
    def issue(self, ins):
        e(ins); self.n += 1
        return self.n
    def wait(self, idx):
        if idx <= self.done:
            return
        allowed = min(self.n - idx, 15)
        e("s_waitcnt lgkmcnt(%d)" % allowed)
        self.done = self.n - allowed

def pipeline(items, ring_base, nslots, ds, depth=None, pre=None):
    n = len(items)
    if depth is None:
        depth = nslots - 1
    last = {}
    def issue(i):
        it = items[i]
        for f in it.get("before_read", []):
            f()
        reg = ring_base + 4 * (i % nslots)
        idx = 0
        for ins in it["reads"](reg):
            idx = ds.issue(ins)
        last[i] = idx
    for i in range(min(depth, n)):
        issue(i)
    if pre:
        pre()
    for i in range(n):
        it = items[i]
        for f in it.get("before_mfma", []):
            f()
        ds.wait(last[i])
        e(it["mfma"](ring_base + 4 * (i % nslots)))
        if i + depth < n:
            issue(i + depth)
        for f in it.get("after", []):
            f()

def srd(s, base_lo, base_hi, nrec):
    e("s_mov_b32 s%d, %s" % (s, base_lo))
    e("s_and_b32 s%d, %s, 0xffff" % (s + 1, base_hi))
    e("s_mov_b32 s%d, %s" % (s + 2, nrec))
    e("s_mov_b32 s%d, 0x00020000" % (s + 3))

def add64(lo, hi, off):
    e("s_add_u32 s%d, s%d, %s" % (lo, lo, off))
    e("s_addc_u32 s%d, s%d, 0" % (hi, hi))

def lane_decomp():
    e("v_lshrrev_b32 v1, 6, v0")
    e("s_nop 1")
    e("v_readfirstlane_b32 s48, v1")
    e("v_and_b32 v0, 63, v0")

def gfun(dst, row, t1):
    e("v_bfe_u32 %s, %s, 1, 1" % (vr(dst), vr(row)))
    e("v_lshlrev_b32 %s, 2, %s" % (vr(dst), vr(dst)))
    e("v_bfe_u32 %s, %s, 3, 1" % (vr(t1), vr(row)))
    e("v_lshl_or_b32 %s, %s, 1, %s" % (vr(dst), vr(t1), vr(dst)))
    e("v_bfe_u32 %s, %s, 2, 1" % (vr(t1), vr(row)))
    e("v_or_b32 %s, %s, %s" % (vr(dst), vr(t1), vr(dst)))

def k1():
    lab("attn_kernel")
    e("s_cmp_ge_u32 s2, 512")
    e("s_cbranch_scc1 attn_exit")
    e("s_load_dwordx16 s[4:19], s[0:1], 0")
    e("s_load_dwordx4 s[20:23], s[0:1], 64")
    e("s_load_dwordx2 s[24:25], s[0:1], 96")
    lane_decomp()
    e("s_and_b32 s52, s2, 7")
    e("s_lshr_b32 s53, s2, 3")
    e("s_and_b32 s56, s53, 7")
    e("s_bfe_u32 s54, s53, 0x20003")
    e("s_lshl_b32 s52, s52, 2")
    e("s_add_u32 s57, s52, s54")
    e("s_lshr_b32 s58, s53, 5")
    e("s_mul_i32 s49, s48, 6144")
    e("s_mul_i32 s50, s48, 3072")
    e("s_lshl_b32 s51, s48, 11")
    e("s_add_u32 s51, s51, 12288")
    e("v_lshrrev_b32 v40, 3, v0")
    e("v_and_b32 v41, 7, v0")
    for j in range(6):
        e("v_add_u32 v42, %d, v40" % (8 * j))
        e("v_mul_u32_u24 v43, 0x5556, v42")
        e("v_lshrrev_b32 v43, 16, v43")
        gfun(44, 43, 45)
        e("v_xor_b32 v44, v44, v41")
        e("v_lshlrev_b32 v44, 4, v44")
        e("v_lshl_add_u32 v44, v40, 7, v44")
        if j >= 4:
            e("v_add_u32 v44, 4096, v44")
        e("v_add_u32 %s, s49, v44" % vr(1 + j))
    e("s_lshl_b32 s52, s48, 3")
    for j in range(3):
        e("v_add_u32 v42, %d, v40" % (8 * j))
        e("v_mul_u32_u24 v43, 0x5556, v42")
        e("v_lshrrev_b32 v43, 16, v43")
        e("v_mul_u32_u24 v46, 3, v43")
        e("v_sub_u32 v46, v42, v46")
        e("v_add_u32 v43, s52, v43")
        gfun(44, 43, 45)
        e("v_xor_b32 v44, v44, v41")
        e("v_lshlrev_b32 v44, 4, v44")
        e("v_lshl_add_u32 v44, v46, 7, v44")
        e("v_mul_u32_u24 v43, 0x3000, v43")
        e("v_add_u32 v44, v43, v44")
        if j:
            e("v_subrev_u32 v44, %d, v44" % (1024 * j))
        e("v_mov_b32 %s, v44" % vr(7 + j))
    e("s_lshl_b32 s52, s48, 5")
    for j in range(2):
        e("v_lshrrev_b32 v42, 2, v0")
        if j:
            e("v_add_u32 v42, 16, v42")
        e("v_bfe_u32 v43, v42, 2, 2")
        e("v_and_b32 v44, 3, v0")
        e("v_xor_b32 v44, v44, v43")
        e("v_lshlrev_b32 v44, 4, v44")
        e("v_add_u32 v42, s52, v42")
        e("v_mul_u32_u24 v42, 0x500, v42")
        e("v_add_u32 v44, v42, v44")
        if j:
            e("v_subrev_u32 v44, 1024, v44")
        e("v_mov_b32 %s, v44" % vr(10 + j))
    e("v_lshrrev_b32 v46, 5, v0")
    e("v_and_b32 v47, 31, v0")
    e("v_bfe_u32 v48, v0, 4, 1")
    e("v_bfe_u32 v49, v0, 2, 2")
    e("v_and_b32 v50, 3, v0")
    e("v_lshrrev_b32 v51, 1, v50")
    e("v_lshl_or_b32 v51, v48, 1, v51")
    e("v_and_b32 v52, 1, v50")
    e("v_lshlrev_b32 v52, 3, v52")
    for (base, kind) in ((12, "wq"), (22, "v")):
        for t in range(2):
            if kind == "wq":
                e("v_lshl_add_u32 v42, v46, 3, v49")
                if t: e("v_add_u32 v42, 4, v42")
            else:
                e("v_lshl_add_u32 v42, v46, 2, v49")
                if t: e("v_add_u32 v42, 8, v42")
            gfun(44, 42, 45)
            e("v_xor_b32 v44, v44, v51")
            e("v_lshlrev_b32 v44, 4, v44")
            e("v_add_u32 v44, v44, v52")
            e("v_mul_u32_u24 v42, 0x180, v42")
            e("v_add_u32 %s, v42, v44" % vr(base + t))
            e("v_xor_b32 %s, 64, %s" % (vr(base + 2 + t), vr(base + t)))
    e("v_bfe_u32 v42, v47, 2, 2")
    e("v_xor_b32 v42, v42, v46")
    e("v_lshlrev_b32 v42, 4, v42")
    e("v_lshl_add_u32 v42, v47, 6, v42")
    e("s_lshl_b32 s52, s48, 11")
    e("v_add_u32 v16, s52, v42")
    e("v_xor_b32 v17, 32, v16")
    gfun(44, 47, 45)
    e("v_xor_b32 v44, v44, v46")
    e("v_lshlrev_b32 v44, 4, v44")
    e("v_mul_u32_u24 v42, 0x180, v47")
    e("v_add_u32 v18, v42, v44")
    for s3 in range(1, 4):
        e("v_xor_b32 %s, %d, v18" % (vr(18 + s3), 32 * s3))
    e("s_waitcnt lgkmcnt(0)")
    e("s_cmp_eq_u32 s58, 0")
    for (d, a, b) in ((4, 4, 14), (6, 6, 16), (8, 8, 18), (10, 10, 20)):
        e("s_cselect_b32 s%d, s%d, s%d" % (d, a, b))
        e("s_cselect_b32 s%d, s%d, s%d" % (d + 1, a + 1, b + 1))
    e("s_mul_i32 s52, s56, 163840")
    add64(4, 5, "s52")
    srd(28, "s4", "s5", "163840")
    e("s_mul_i32 s52, s57, 384")
    add64(10, 11, "s52")
    e("s_sub_u32 s53, %d, s52" % (640 * 12288))
    srd(32, "s10", "s11", "s53")
    e("s_lshl_b32 s52, s56, 5")
    e("s_add_u32 s52, s52, s57")
    e("s_mul_i32 s53, s52, 196608")
    add64(6, 7, "s53")
    add64(8, 9, "s53")
    srd(36, "s6", "s7", "196608")
    srd(40, "s8", "s9", "196608")
    e("s_lshl_b32 s52, s58, 3")
    e("s_add_u32 s52, s52, s56")
    e("s_mul_i32 s52, s52, 96")
    e("s_mul_i32 s53, s57, 3")
    e("s_add_u32 s52, s52, s53")
    e("s_lshl_b32 s52, s52, 14")
    add64(24, 25, "s52")
    srd(44, "s24", "s25", "49152")
    e("s_mov_b32 s59, 0x3dd53b95")
    import struct, math
    c = (192.0 ** -0.5) * math.log2(math.e)
    L[-1] = "    s_mov_b32 s59, 0x%08x" % struct.unpack("<I", struct.pack("<f", c))[0]
    if OPT["prio"]:
        e("s_cmp_eq_u32 s58, 0")
        e("s_cbranch_scc0 attn_noprio")
        e("s_setprio 2")
        lab("attn_noprio")

    def issue_q(t):
        st = (t & 3) * 20480
        e("s_add_u32 m0, s50, %d" % st)
        e("s_mov_b32 s53, %d" % (t * 393216))
        for j in range(3):
            e("buffer_load_dwordx4 %s, s[32:35], s53 offen offset:%d lds" % (vr(7 + j), 1024 * j))
        e("s_add_u32 m0, s51, %d" % st)
        e("s_mov_b32 s54, %d" % (t * 64))
        for j in range(2):
            e("buffer_load_dwordx4 %s, s[28:31], s54 offen offset:%d lds" % (vr(10 + j), 1024 * j))

    nt = " nt" if OPT["nt_kv"] else ""
    def issue_kv(T):
        slot = (T % 3) * 24576
        s = "s[36:39]" if T % 2 == 0 else "s[40:43]"
        e("s_add_u32 m0, s49, %d" % slot)
        e("s_mov_b32 s55, %d" % ((T // 2) * 24576))
        for j in range(4):
            e("buffer_load_dwordx4 %s, %s, s55 offen offset:%d%s lds" % (vr(1 + j), s, 1024 * j, nt))
        e("s_add_u32 m0, s49, %d" % (slot + 4096))
        e("s_nop 0")
        for j in range(4, 6):
            e("buffer_load_dwordx4 %s, %s, s55 offen offset:%d%s lds" % (vr(1 + j), s, 1024 * (j - 4), nt))

    ACC, Q, S, P, RING = 160, 112, 80, 64, 32
    ds = DS()
    for t in range(3):
        issue_q(t)
    for t in range(20):
        st = (t & 3) * 20480
        e("s_waitcnt vmcnt(%d)" % (10 if t <= 17 else (5 if t == 18 else 6)))
        e("s_barrier")
        if t + 3 < 20:
            issue_q(t + 3)
        if t == 18: issue_kv(0)
        if t == 19: issue_kv(1)
        a = [12, 13, 14, 15]; xa = [16, 17]; off = st
        if (t & 3) == 3:
            for i in range(4):
                e("v_add_u32 %s, %d, %s" % (vr(26 + i), st, vr(12 + i)))
            e("v_add_u32 v30, %d, v16" % st)
            e("v_add_u32 v31, %d, v17" % st)
            a = [26, 27, 28, 29]; xa = [30, 31]; off = 0
        xi = []
        for s in range(2):
            xi.append(ds.issue("ds_read_b128 %s, %s offset:%d" % (vr(56 + 4 * s, 4), vr(xa[s]), off + 12288)))
        items = []
        for s in range(2):
            for dt in range(6):
                def rd(reg, s=s, dt=dt):
                    o = off + s * 6144 + (dt >> 1) * 128
                    return ["ds_read_b64_tr_b16 %s, %s offset:%d" % (vr(reg + 2 * tt, 2), vr(a[2 * (dt & 1) + tt]), o) for tt in range(2)]
                def mf(reg, s=s, dt=dt):
                    c = "0" if (t == 0 and s == 0) else vr(ACC + 16 * dt, 16)
                    return "%s %s, %s, %s, %s" % (MFMA, vr(ACC + 16 * dt, 16), vr(reg, 4), vr(56 + 4 * s, 4), c)
                items.append(dict(reads=rd, mfma=mf))
        pipeline(items, RING, 6, ds)
    e("s_nop 7"); e("s_nop 7")
    for dt in range(6):
        for j in range(8):
            e("v_cvt_pk_bf16_f32 %s, %s, %s" % (vr(Q + 8 * dt + j), vr(ACC + 16 * dt + 2 * j), vr(ACC + 16 * dt + 2 * j + 1)))
    e("s_nop 1")
    for s in range(12):
        e("v_permlane32_swap_b32 %s, %s" % (vr(Q + 4 * s), vr(Q + 4 * s + 2)))
        e("v_permlane32_swap_b32 %s, %s" % (vr(Q + 4 * s + 1), vr(Q + 4 * s + 3)))
    e("v_mov_b32 v30, 0xff800000")
    e("v_mov_b32 v31, 0")
    if OPT["prio"]:
        e("s_setprio 0")
    M, LS, AL = 30, 31, 12
    for i in range(16):
        slot = (i % 3) * 24576
        tile = i // 2
        e("s_waitcnt vmcnt(%d)" % (6 if i < 15 else 0))
        e("s_barrier")
        if i + 2 < 16:
            issue_kv(i + 2)
        base = 18 if i % 2 == 0 else 22
        a = [base + x for x in range(4)]; off = slot
        if i % 3 == 2:
            for x in range(4):
                e("v_add_u32 %s, %d, %s" % (vr(26 + x), slot, vr(base + x)))
            a = [26, 27, 28, 29]; off = 0
        if i % 2 == 0:
            items = []
            for s in range(12):
                for kt in range(2):
                    def rd(reg, s=s, kt=kt):
                        return ["ds_read_b128 %s, %s offset:%d" % (vr(reg, 4), vr(a[s & 3]), off + kt * 12288 + (s >> 2) * 128)]
                    def mf(reg, s=s, kt=kt):
                        c = "0" if s == 0 else vr(S + 16 * kt, 16)
                        return "%s %s, %s, %s, %s" % (MFMA, vr(S + 16 * kt, 16), vr(reg, 4), vr(Q + 4 * s, 4), c)
                    items.append(dict(reads=rd, mfma=mf))
            pipeline(items, RING, 8, ds)
            e("s_nop 7"); e("s_nop 3")
            e("v_max3_f32 v8, %s, %s, %s" % (vr(S), vr(S + 1), vr(S + 2)))
            e("s_nop 0")
            e("v_max3_f32 v9, %s, %s, %s" % (vr(S + 16), vr(S + 17), vr(S + 18)))
            for x in range(6):
                e("v_max3_f32 v8, v8, %s, %s" % (vr(S + 3 + 2 * x), vr(S + 4 + 2 * x)))
                e("v_max3_f32 v9, v9, %s, %s" % (vr(S + 19 + 2 * x), vr(S + 20 + 2 * x)))
            e("v_max3_f32 v8, v8, %s, %s" % (vr(S + 15), vr(S + 31)))
            e("v_max3_f32 v8, v8, v9, %s" % vr(M))
            e("s_nop 0")
            e("v_mov_b32 v9, v8")
            e("s_nop 1")
            e("v_permlane32_swap_b32 v9, v8")
            e("s_nop 1")
            e("v_max_f32 v8, v8, v9")
            e("v_sub_f32 v9, %s, v8" % vr(M))
            e("v_mul_f32 v10, s59, v8")
            e("v_mul_f32 v9, s59, v9")
            e("v_mov_b32 %s, v8" % vr(M))
            e("v_exp_f32 %s, v9" % vr(AL))
            for x in range(32):
                e("v_fma_f32 %s, %s, s59, -v10" % (vr(S + x), vr(S + x)))
                if x >= 1:
                    e("v_exp_f32 %s, %s" % (vr(S + x - 1), vr(S + x - 1)))
            e("v_exp_f32 %s, %s" % (vr(S + 31), vr(S + 31)))
            e("v_pk_add_f32 v[14:15], %s, %s" % (vr(S, 2), vr(S + 2, 2)))
            e("v_pk_add_f32 v[16:17], %s, %s" % (vr(S + 4, 2), vr(S + 6, 2)))
            for x in range(4, 16):
                d = 14 if x % 2 == 0 else 16
                e("v_pk_add_f32 %s, %s, %s" % (vr(d, 2), vr(d, 2), vr(S + 2 * x, 2)))
            for x in range(16):
                e("v_cvt_pk_bf16_f32 %s, %s, %s" % (vr(P + x), vr(S + 2 * x), vr(S + 2 * x + 1)))
            e("v_pk_add_f32 v[14:15], v[14:15], v[16:17]")
            e("s_nop 0")
            e("v_add_f32 v14, v14, v15")
            e("s_nop 0")
            e("v_fma_f32 %s, %s, %s, v14" % (vr(LS), vr(LS), vr(AL)))
        else:
            items = []
            for kb in range(4):
                for dt in range(6):
                    def rd(reg, kb=kb, dt=dt):
                        o = off + kb * 6144 + (dt >> 1) * 128
                        return ["ds_read_b64_tr_b16 %s, %s offset:%d" % (vr(reg + 2 * tt, 2), vr(a[2 * (dt & 1) + tt]), o) for tt in range(2)]
                    def mf(reg, kb=kb, dt=dt):
                        c = "0" if (tile == 0 and kb == 0) else vr(ACC + 16 * dt, 16)
                        return "%s %s, %s, %s, %s" % (MFMA, vr(ACC + 16 * dt, 16), vr(reg, 4), vr(P + 4 * kb, 4), c)
                    items.append(dict(reads=rd, mfma=mf))
            def pre():
                if tile > 0:
                    for x in range(48):
                        e("v_pk_mul_f32 %s, %s, %s op_sel_hi:[1,0]" % (vr(ACC + 2 * x, 2), vr(ACC + 2 * x, 2), vr(AL, 2)))
                    e("s_nop 1")
            pipeline(items, RING, 8, ds, pre=pre)
    e("v_mov_b32 v9, %s" % vr(LS))
    e("v_mov_b32 v8, %s" % vr(LS))
    e("s_nop 1")
    e("v_permlane32_swap_b32 v9, v8")
    e("s_nop 1")
    e("v_add_f32 v8, v8, v9")
    e("s_nop 0")
    e("v_rcp_f32 v12, v8")
    e("v_and_b32 v1, 31, v0")
    e("v_lshrrev_b32 v2, 5, v0")
    e("v_bfe_u32 v3, v1, 1, 3")
    e("v_xor_b32 v3, v3, v2")
    e("v_lshlrev_b32 v3, 4, v3")
    e("v_lshl_add_u32 v3, v1, 7, v3")
    e("s_lshl_b32 s52, s48, 12")
    e("v_add_u32 v14, s52, v3")
    e("v_xor_b32 v15, 32, v14")
    e("v_xor_b32 v16, 64, v14")
    e("v_xor_b32 v17, 96, v14")
    e("s_nop 7")
    for x in range(48):
        e("v_pk_mul_f32 %s, %s, %s op_sel_hi:[1,0]" % (vr(ACC + 2 * x, 2), vr(ACC + 2 * x, 2), "v[12:13]"))
    T = 64
    for dt in range(6):
        for j in range(8):
            e("v_cvt_pk_bf16_f32 %s, %s, %s" % (vr(T + 8 * dt + j), vr(ACC + 16 * dt + 2 * j), vr(ACC + 16 * dt + 2 * j + 1)))
    e("s_nop 1")
    for dt in range(6):
        for ip in range(2):
            b = T + 8 * dt + 4 * ip
            e("v_permlane32_swap_b32 %s, %s" % (vr(b), vr(b + 2)))
            e("v_permlane32_swap_b32 %s, %s" % (vr(b + 1), vr(b + 3)))
    e("s_mov_b32 s53, 16384")
    e("s_mov_b32 s54, 32768")
    e("s_nop 1")
    for dt in range(6):
        so = ["0", "s53", "s54"][dt >> 1]
        for ip in range(2):
            e("buffer_store_dwordx4 %s, %s, s[44:47], %s offen" % (vr(T + 8 * dt + 4 * ip, 4), vr(14 + 2 * (dt & 1) + ip), so))
    lab("attn_exit")
    e("s_endpgm")

PART = 32 * 1024 * 1024
def k2():
    lab("oproj_kernel")
    e("s_cmp_ge_u32 s2, 256")
    e("s_cbranch_scc1 oproj_exit")
    e("s_load_dwordx2 s[4:5], s[0:1], 32")
    e("s_load_dwordx2 s[6:7], s[0:1], 72")
    e("s_load_dwordx2 s[24:25], s[0:1], 96")
    lane_decomp()
    e("s_and_b32 s52, s2, 7")
    e("s_lshr_b32 s58, s52, 2")
    e("s_and_b32 s57, s52, 3")
    e("s_lshr_b32 s53, s2, 3")
    e("s_lshr_b32 s56, s53, 2")
    e("s_and_b32 s55, s53, 3")
    e("s_lshl_b32 s52, s48, 12")
    e("v_lshlrev_b32 v1, 4, v0")
    e("v_add_u32 v1, s52, v1")
    e("s_mul_i32 s52, s48, 320")
    for j in range(5):
        e("v_add_u32 v40, s52, v0")
        if j: e("v_add_u32 v40, %d, v40" % (64 * j))
        e("v_mul_u32_u24 v41, 0xccd, v40")
        e("v_lshrrev_b32 v41, 16, v41")
        e("v_mul_u32_u24 v42, 20, v41")
        e("v_sub_u32 v42, v40, v42")
        e("v_lshlrev_b32 v42, 4, v42")
        e("v_mul_u32_u24 v41, 0x500, v41")
        e("v_add_u32 v42, v41, v42")
        if 0 < j < 4:
            e("v_subrev_u32 v42, %d, v42" % (1024 * j))
        e("v_mov_b32 %s, v42" % vr(2 + j))
    e("v_lshrrev_b32 v46, 5, v0")
    e("v_and_b32 v47, 31, v0")
    e("v_bfe_u32 v48, v0, 4, 1")
    e("v_bfe_u32 v49, v0, 2, 2")
    e("v_and_b32 v50, 3, v0")
    e("v_lshl_add_u32 v40, v46, 3, v49")
    e("v_mul_u32_u24 v40, 0x140, v40")
    e("v_lshl_add_u32 v40, v48, 5, v40")
    e("v_lshl_add_u32 v40, v50, 3, v40")
    for st in range(4):
        e("v_add_u32 %s, %d, v40" % (vr(8 + st), st * 36864 + 16384))
    e("v_bfe_u32 v41, v47, 1, 3")
    e("v_xor_b32 v41, v41, v46")
    e("v_lshlrev_b32 v41, 4, v41")
    e("v_lshl_add_u32 v41, v47, 7, v41")
    e("s_lshl_b32 s52, s48, 12")
    e("v_add_u32 v41, s52, v41")
    for s in range(4):
        e("v_xor_b32 v42, %d, v41" % (32 * s))
        for st in range(4):
            e("v_add_u32 %s, %d, v42" % (vr(12 + 4 * st + s), st * 36864))
    e("s_waitcnt lgkmcnt(0)")
    e("s_cmp_eq_u32 s58, 0")
    e("s_cselect_b32 s4, s4, s6")
    e("s_cselect_b32 s5, s5, s7")
    e("s_mul_i32 s52, s57, %d" % (1536 * 1280))
    e("s_mul_i32 s53, s55, 320")
    e("s_add_u32 s52, s52, s53")
    add64(4, 5, "s52")
    e("s_sub_u32 s53, %d, s52" % (6144 * 1280))
    srd(32, "s4", "s5", "s53")
    e("s_lshl_b32 s52, s58, 3")
    e("s_add_u32 s52, s52, s56")
    e("s_mul_i32 s52, s52, 96")
    e("s_mul_i32 s53, s57, 24")
    e("s_add_u32 s52, s52, s53")
    e("s_lshl_b32 s52, s52, 14")
    e("s_add_u32 s8, s24, s52")
    e("s_addc_u32 s9, s25, 0")
    srd(28, "s8", "s9", "%d" % (24 * 16384))
    e("s_lshl_b32 s52, s58, 3")
    e("s_add_u32 s52, s52, s56")
    e("s_lshl_b32 s52, s52, 2")
    e("s_add_u32 s52, s52, s55")
    e("s_lshl_b32 s52, s52, 2")
    e("s_add_u32 s52, s52, s57")
    e("s_mul_i32 s52, s52, 40960")
    e("s_add_u32 s52, s52, %d" % PART)
    add64(24, 25, "s52")
    srd(44, "s24", "s25", "40960")
    e("s_lshl_b32 s49, s48, 12")
    e("s_mul_i32 s50, s48, 5120")
    e("s_add_u32 s50, s50, 16384")
    def issue(kt):
        st = (kt & 3) * 36864
        e("s_add_u32 m0, s49, %d" % st)
        e("s_mov_b32 s53, %d" % (kt * 16384))
        for j in range(4):
            e("buffer_load_dwordx4 v1, s[28:31], s53 offen offset:%d lds" % (1024 * j))
        e("s_add_u32 m0, s50, %d" % st)
        e("s_mov_b32 s54, %d" % (kt * 81920))
        for j in range(4):
            e("buffer_load_dwordx4 %s, s[32:35], s54 offen offset:%d lds" % (vr(2 + j), 1024 * j))
        e("s_add_u32 m0, s50, %d" % (st + 4096))
        e("s_nop 0")
        e("buffer_load_dwordx4 v6, s[32:35], s54 offen lds")
    ACC, RING, BF = 128, 64, 32
    ds = DS()
    for kt in range(3):
        issue(kt)
    items = []
    bidx = {}
    for kt in range(24):
        st = kt & 3
        for s in range(4):
            for n5 in range(5):
                it = {}
                def rd(reg, s=s, n5=n5, st=st):
                    o = s * 5120 + n5 * 64
                    return ["ds_read_b64_tr_b16 %s, %s offset:%d" % (vr(reg + 2 * tt, 2), vr(8 + st), o + 1280 * tt) for tt in range(2)]
                def mf(reg, s=s, n5=n5, kt=kt):
                    c = "0" if (kt == 0 and s == 0) else vr(ACC + 16 * n5, 16)
                    return "%s %s, %s, %s, %s" % (MFMA, vr(ACC + 16 * n5, 16), vr(reg, 4), vr(BF + 16 * (kt & 1) + 4 * s, 4), c)
                br = []
                if s == 0 and n5 == 0:
                    def sync(kt=kt):
                        if kt == 0: n = 18
                        elif kt == 23: n = 0
                        else: n = 9
                        e("s_waitcnt vmcnt(%d)" % n)
                        e("s_barrier")
                        if kt >= 1 and kt + 2 < 24:
                            issue(kt + 2)
                    br.append(sync)
                if n5 == 0:
                    def bread(s=s, kt=kt, st=st):
                        bidx[(kt, s)] = ds.issue("ds_read_b128 %s, %s" % (vr(BF + 16 * (kt & 1) + 4 * s, 4), vr(12 + 4 * st + s)))
                    br.append(bread)
                it["reads"] = rd; it["mfma"] = mf; it["before_read"] = br
                items.append(it)
    pipeline(items, RING, 8, ds)
    e("s_nop 7"); e("s_nop 7")
    T = 32
    for n5 in range(5):
        for j in range(8):
            e("v_cvt_pk_bf16_f32 %s, %s, %s" % (vr(T + 8 * n5 + j), vr(ACC + 16 * n5 + 2 * j), vr(ACC + 16 * n5 + 2 * j + 1)))
    e("s_mul_i32 s52, s48, 10240")
    e("v_lshlrev_b32 v1, 4, v0")
    e("v_add_u32 v1, s52, v1")
    for x in range(10):
        e("s_mov_b32 s53, %d" % (1024 * x))
        e("buffer_store_dwordx4 %s, v1, s[44:47], s53 offen" % vr(T + 4 * x, 4))
    lab("oproj_exit")
    e("s_endpgm")

def k3():
    lab("reduce_kernel")
    e("s_cmp_ge_u32 s2, 640")
    e("s_cbranch_scc1 reduce_exit")
    e("s_load_dwordx2 s[4:5], s[0:1], 80")
    e("s_load_dwordx2 s[24:25], s[0:1], 96")
    lane_decomp()
    e("s_mul_i32 s52, s2, 0x199a")
    e("s_lshr_b32 s52, s52, 16")
    e("s_mul_i32 s53, s52, 10")
    e("s_sub_u32 s53, s2, s53")
    e("s_mul_i32 s54, s52, 163840")
    e("s_mul_i32 s55, s48, 10240")
    e("s_lshl_b32 s56, s53, 10")
    e("s_add_u32 s55, s55, s56")
    e("v_lshlrev_b32 v1, 4, v0")
    e("v_add_u32 v1, s55, v1")
    e("s_lshr_b32 s56, s52, 5")
    e("s_bfe_u32 s57, s52, 0x30002")
    e("s_and_b32 s58, s52, 3")
    e("s_mul_i32 s56, s56, 1280")
    e("s_mul_i32 s58, s58, 320")
    e("s_add_u32 s56, s56, s58")
    e("s_lshl_b32 s58, s53, 5")
    e("s_add_u32 s56, s56, s58")
    e("s_lshl_b32 s57, s57, 7")
    e("s_lshl_b32 s58, s48, 5")
    e("s_add_u32 s57, s57, s58")
    e("s_mul_i32 s57, s57, 2560")
    e("s_add_u32 s56, s56, s57")
    e("v_and_b32 v2, 31, v0")
    e("v_mul_u32_u24 v2, 0xa00, v2")
    e("v_lshrrev_b32 v3, 5, v0")
    e("v_lshl_add_u32 v2, v3, 4, v2")
    e("v_add_u32 v2, s56, v2")
    e("s_waitcnt lgkmcnt(0)")
    e("s_add_u32 s54, s54, %d" % PART)
    add64(24, 25, "s54")
    srd(28, "s24", "s25", "163840")
    srd(32, "s4", "s5", "%d" % (8 * 128 * 2560))
    for ks in range(4):
        e("s_mov_b32 s53, %d" % (ks * 40960))
        e("buffer_load_dwordx4 %s, v1, s[28:31], s53 offen" % vr(4 + 4 * ks, 4))
    for ks in range(4):
        e("s_waitcnt vmcnt(%d)" % (3 - ks))
        for j in range(4):
            src = 4 + 4 * ks + j
            if ks == 0:
                e("v_lshlrev_b32 %s, 16, %s" % (vr(32 + 2 * j), vr(src)))
                e("v_and_b32 %s, 0xffff0000, %s" % (vr(33 + 2 * j), vr(src)))
            else:
                e("v_lshlrev_b32 v24, 16, %s" % vr(src))
                e("v_and_b32 v25, 0xffff0000, %s" % vr(src))
                e("v_pk_add_f32 %s, %s, v[24:25]" % (vr(32 + 2 * j, 2), vr(32 + 2 * j, 2)))
    for j in range(4):
        e("v_cvt_pk_bf16_f32 %s, %s, %s" % (vr(40 + j), vr(32 + 2 * j), vr(33 + 2 * j)))
    e("s_nop 1")
    e("v_permlane32_swap_b32 v40, v42")
    e("v_permlane32_swap_b32 v41, v43")
    e("s_nop 1")
    e("buffer_store_dwordx4 v[40:43], v2, s[32:35], 0 offen")
    lab("reduce_exit")
    e("s_endpgm")

def desc(name, vg):
    L.append(".amdhsa_kernel %s" % name)
    acc = (vg + 3) // 4 * 4
    for s in (".amdhsa_next_free_vgpr %d" % vg, ".amdhsa_next_free_sgpr 102", ".amdhsa_accum_offset %d" % acc,
              ".amdhsa_group_segment_fixed_size 0", ".amdhsa_kernarg_size 104", ".amdhsa_user_sgpr_count 2",
              ".amdhsa_user_sgpr_kernarg_segment_ptr 1", ".amdhsa_system_sgpr_workgroup_id_x 1"):
        L.append("  " + s)
    L.append(".end_amdhsa_kernel")

ref = open(REF).read().split("\n")
hdr = []
for ln in ref:
    if ln.startswith("; @launch"):
        break
    hdr.append(ln)
L.extend(hdr)
L.append("; @launch kernel=attn_kernel grid=(512,1,1) block=(256,1,1) lds=81920")
L.append("; @launch kernel=oproj_kernel grid=(256,1,1) block=(256,1,1) lds=147456")
L.append("; @launch kernel=reduce_kernel grid=(640,1,1) block=(256,1,1) lds=0")
L.append('.amdgcn_target "amdgcn-amd-amdhsa--gfx950"')
L.append(".text")
for (nm, fn) in (("attn_kernel", k1), ("oproj_kernel", k2), ("reduce_kernel", k3)):
    L.append(".globl %s" % nm)
    L.append(".p2align 8")
    L.append(".type %s,@function" % nm)
    fn()
L.append('.section .rodata,"a"')
for (nm, vg) in (("attn_kernel", 256), ("oproj_kernel", 208), ("reduce_kernel", 44)):
    L.append(".p2align 6")
    desc(nm, vg)
open(OUT, "w").write("\n".join(L) + "\n")
print("wrote", OUT, len(L), "lines")
```

```python
import sys, re
NAME = "concat_heads__mha_block_cached__mha_block_cached__near_ridge"
OUT = "cdna_kernels/%s.s" % NAME
REF = OUT + ".ref"
OPT = dict(gmask=7, xmask=3, qx=1, qw=1, qsame=0, qcomp=1, prof=0, k2vg=0, k2rep=1, k2o=1, k2w=1, k2same=0, nt_kv=1, prio=0, touch=1, k2h=1, k2d=6, ont=0, noq=0, nocomp=0, nosm=0, nodma=0, k2nocomp=0, k2nodma=0, nods=0, nomfma=0, nodsk=0, nodsv=0)
for a in sys.argv[1:]:
    if "=" in a:
        k, v = a.split("=")
        if k == "out":
            OUT = v
        else:
            OPT[k] = int(v)

L = []
def e(s):
    L.append("    " + s)
def lab(s):
    L.append(s + ":")
def vr(a, n=1):
    return "v%d" % a if n == 1 else "v[%d:%d]" % (a, a + n - 1)
def sr(a, n=1):
    return "s%d" % a if n == 1 else "s[%d:%d]" % (a, a + n - 1)

MFMA = "v_mfma_f32_32x32x16_bf16"

class DS:
    def __init__(self):
        self.n = 0
        self.done = 0
    def issue(self, ins):
        e(ins); self.n += 1
        return self.n
    def wait(self, idx):
        if idx <= self.done:
            return
        allowed = min(self.n - idx, 15)
        e("s_waitcnt lgkmcnt(%d)" % allowed)
        self.done = self.n - allowed

def pipeline(items, ring_base, nslots, ds, depth=None, pre=None):
    n = len(items)
    if depth is None:
        depth = nslots - 1
    last = {}
    def issue(i):
        it = items[i]
        for f in it.get("before_read", []):
            f()
        reg = ring_base + 4 * (i % nslots)
        idx = 0
        for ins in it["reads"](reg):
            if OPT["nods"] or (OPT["nodsk"] and "b128" in ins) or (OPT["nodsv"] and "tr_b16" in ins):
                continue
            idx = ds.issue(ins)
        last[i] = idx
    for i in range(min(depth, n)):
        issue(i)
    if pre:
        pre()
    for i in range(n):
        it = items[i]
        for f in it.get("before_mfma", []):
            f()
        ds.wait(last[i])
        if not OPT["nomfma"]:
            e(it["mfma"](ring_base + 4 * (i % nslots)))
        if i + depth < n:
            issue(i + depth)
        for f in it.get("after", []):
            f()

def srd(s, base_lo, base_hi, nrec):
    e("s_mov_b32 s%d, %s" % (s, base_lo))
    e("s_and_b32 s%d, %s, 0xffff" % (s + 1, base_hi))
    e("s_mov_b32 s%d, %s" % (s + 2, nrec))
    e("s_mov_b32 s%d, 0x00020000" % (s + 3))

def add64(lo, hi, off):
    e("s_add_u32 s%d, s%d, %s" % (lo, lo, off))
    e("s_addc_u32 s%d, s%d, 0" % (hi, hi))

def lane_decomp():
    e("v_lshrrev_b32 v1, 6, v0")
    e("s_nop 1")
    e("v_readfirstlane_b32 s48, v1")
    e("v_and_b32 v0, 63, v0")

def gfun(dst, row, t1):
    e("v_bfe_u32 %s, %s, 1, 1" % (vr(dst), vr(row)))
    e("v_lshlrev_b32 %s, 2, %s" % (vr(dst), vr(dst)))
    e("v_bfe_u32 %s, %s, 3, 1" % (vr(t1), vr(row)))
    e("v_lshl_or_b32 %s, %s, 1, %s" % (vr(dst), vr(t1), vr(dst)))
    e("v_bfe_u32 %s, %s, 2, 1" % (vr(t1), vr(row)))
    e("v_or_b32 %s, %s, %s" % (vr(dst), vr(t1), vr(dst)))
    if OPT["gmask"] != 7:
        e("v_and_b32 %s, %d, %s" % (vr(dst), OPT["gmask"], vr(dst)))

def stamp(i):
    if OPT["prof"]:
        e("s_memrealtime s[%d:%d]" % (64 + 2 * i, 65 + 2 * i))
def stamp_flush(n, region):
    if not OPT["prof"]:
        return
    e("s_load_dwordx2 s[88:89], s[0:1], 96")
    e("s_waitcnt lgkmcnt(0)")
    e("s_lshl_b32 s92, s2, 6")
    e("s_add_u32 s92, s92, %d" % (128 * 1024 * 1024 + region * 65536))
    e("s_add_u32 s88, s88, s92")
    e("s_addc_u32 s89, s89, 0")
    e("s_and_b32 s89, s89, 0xffff")
    e("s_mov_b32 s90, 64")
    e("s_mov_b32 s91, 0x00020000")
    e("s_cmp_eq_u32 s48, 0")
    e("s_cbranch_scc0 prof_skip%d" % region)
    for i in range(n):
        e("v_mov_b32 v1, s%d" % (64 + 2 * i))
        e("v_mov_b32 v2, %d" % (4 * i))
        e("buffer_store_dword v1, v2, s[88:91], 0 offen")
        e("s_waitcnt vmcnt(0)")
    lab("prof_skip%d" % region)

def k1():
    lab("attn_kernel")
    e("s_cmp_ge_u32 s2, 512")
    e("s_cbranch_scc1 attn_exit")
    stamp(0)
    e("s_load_dwordx16 s[4:19], s[0:1], 0")
    e("s_load_dwordx4 s[20:23], s[0:1], 64")
    e("s_load_dwordx2 s[24:25], s[0:1], 96")
    lane_decomp()
    e("s_and_b32 s58, s2, 1")
    e("s_bfe_u32 s52, s2, 0x20001")
    e("s_bfe_u32 s56, s2, 0x30003")
    e("s_lshr_b32 s60, s2, 6")
    e("s_lshl_b32 s52, s52, 3")
    e("s_add_u32 s57, s52, s60")
    e("s_mul_i32 s49, s48, 6144")
    e("s_mul_i32 s50, s48, 3072")
    e("s_lshl_b32 s51, s48, 11")
    e("s_add_u32 s51, s51, 12288")
    e("v_lshrrev_b32 v40, 3, v0")
    e("v_and_b32 v41, 7, v0")
    for j in range(6):
        e("v_add_u32 v42, %d, v40" % (8 * j))
        e("v_mul_u32_u24 v43, 0x5556, v42")
        e("v_lshrrev_b32 v43, 16, v43")
        gfun(44, 43, 45)
        e("v_xor_b32 v44, v44, v41")
        e("v_lshlrev_b32 v44, 4, v44")
        e("v_lshl_add_u32 v44, v40, 7, v44")
        if j >= 4:
            e("v_add_u32 v44, 4096, v44")
        e("v_add_u32 %s, s49, v44" % vr(1 + j))
    e("s_lshl_b32 s52, s48, 3")
    for j in range(3):
        e("v_add_u32 v42, %d, v40" % (8 * j))
        e("v_mul_u32_u24 v43, 0x5556, v42")
        e("v_lshrrev_b32 v43, 16, v43")
        e("v_mul_u32_u24 v46, 3, v43")
        e("v_sub_u32 v46, v42, v46")
        e("v_add_u32 v43, s52, v43")
        gfun(44, 43, 45)
        e("v_xor_b32 v44, v44, v41")
        e("v_lshlrev_b32 v44, 4, v44")
        e("v_lshl_add_u32 v44, v46, 7, v44")
        e("v_mul_u32_u24 v43, 0x3000, v43")
        e("v_add_u32 v44, v43, v44")
        if j:
            e("v_subrev_u32 v44, %d, v44" % (1024 * j))
        e("v_mov_b32 %s, v44" % vr(7 + j))
    e("s_lshl_b32 s52, s48, 5")
    for j in range(2):
        e("v_lshrrev_b32 v42, 2, v0")
        if j:
            e("v_add_u32 v42, 16, v42")
        e("v_bfe_u32 v43, v42, 2, 2")
        if OPT["xmask"] != 3:
            e("v_and_b32 v43, %d, v43" % OPT["xmask"])
        e("v_and_b32 v44, 3, v0")
        e("v_xor_b32 v44, v44, v43")
        e("v_lshlrev_b32 v44, 4, v44")
        e("v_add_u32 v42, s52, v42")
        e("v_mul_u32_u24 v42, 0x500, v42")
        e("v_add_u32 v44, v42, v44")
        if j:
            e("v_subrev_u32 v44, 1024, v44")
        e("v_mov_b32 %s, v44" % vr(10 + j))
    e("v_lshrrev_b32 v46, 5, v0")
    e("v_and_b32 v47, 31, v0")
    e("v_bfe_u32 v48, v0, 4, 1")
    e("v_bfe_u32 v49, v0, 2, 2")
    e("v_and_b32 v50, 3, v0")
    e("v_lshrrev_b32 v51, 1, v50")
    e("v_lshl_or_b32 v51, v48, 1, v51")
    e("v_and_b32 v52, 1, v50")
    e("v_lshlrev_b32 v52, 3, v52")
    for (base, kind) in ((12, "wq"), (22, "v")):
        for t in range(2):
            if kind == "wq":
                e("v_lshl_add_u32 v42, v46, 3, v49")
                if t: e("v_add_u32 v42, 4, v42")
            else:
                e("v_lshl_add_u32 v42, v46, 2, v49")
                if t: e("v_add_u32 v42, 8, v42")
            gfun(44, 42, 45)
            e("v_xor_b32 v44, v44, v51")
            e("v_lshlrev_b32 v44, 4, v44")
            e("v_add_u32 v44, v44, v52")
            e("v_mul_u32_u24 v42, 0x180, v42")
            e("v_add_u32 %s, v42, v44" % vr(base + t))
            e("v_xor_b32 %s, 64, %s" % (vr(base + 2 + t), vr(base + t)))
    e("v_bfe_u32 v42, v47, 2, 2")
    e("v_xor_b32 v42, v42, v46")
    e("v_lshlrev_b32 v42, 4, v42")
    e("v_lshl_add_u32 v42, v47, 6, v42")
    e("s_lshl_b32 s52, s48, 11")
    e("v_add_u32 v16, s52, v42")
    e("v_xor_b32 v17, 32, v16")
    gfun(44, 47, 45)
    e("v_xor_b32 v44, v44, v46")
    e("v_lshlrev_b32 v44, 4, v44")
    e("v_mul_u32_u24 v42, 0x180, v47")
    e("v_add_u32 v18, v42, v44")
    for s3 in range(1, 4):
        e("v_xor_b32 %s, %d, v18" % (vr(18 + s3), 32 * s3))
    e("s_waitcnt lgkmcnt(0)")
    e("s_cmp_eq_u32 s58, 0")
    for (d, a, b) in ((4, 4, 14), (6, 6, 16), (8, 8, 18), (10, 10, 20)):
        e("s_cselect_b32 s%d, s%d, s%d" % (d, a, b))
        e("s_cselect_b32 s%d, s%d, s%d" % (d + 1, a + 1, b + 1))
    e("s_mul_i32 s52, s56, 163840")
    add64(4, 5, "s52")
    srd(28, "s4", "s5", "163840")
    e("s_mul_i32 s52, s57, 384")
    add64(10, 11, "s52")
    e("s_sub_u32 s53, %d, s52" % (640 * 12288))
    srd(32, "s10", "s11", "s53")
    e("s_lshl_b32 s52, s56, 5")
    e("s_add_u32 s52, s52, s57")
    e("s_mul_i32 s53, s52, 196608")
    add64(6, 7, "s53")
    add64(8, 9, "s53")
    srd(36, "s6", "s7", "196608")
    srd(40, "s8", "s9", "196608")
    e("s_lshl_b32 s52, s58, 3")
    e("s_add_u32 s52, s52, s56")
    e("s_mul_i32 s52, s52, 96")
    e("s_mul_i32 s53, s57, 3")
    e("s_add_u32 s52, s52, s53")
    e("s_lshl_b32 s52, s52, 14")
    add64(24, 25, "s52")
    srd(44, "s24", "s25", "49152")
    e("s_mov_b32 s59, 0x3dd53b95")
    import struct, math
    c = (192.0 ** -0.5) * math.log2(math.e)
    L[-1] = "    s_mov_b32 s59, 0x%08x" % struct.unpack("<I", struct.pack("<f", c))[0]
    if OPT["prio"]:
        e("s_cmp_lt_u32 s60, 4")
        e("s_cbranch_scc0 attn_noprio")
        e("s_setprio 2")
        lab("attn_noprio")

    def issue_q(t):
        st = (t & 3) * 20480
        tg = (t & 3) if OPT["qsame"] else t
        if OPT["qw"]:
            e("s_add_u32 m0, s50, %d" % st)
            e("s_mov_b32 s53, %d" % (tg * 393216))
            for j in range(3):
                e("buffer_load_dwordx4 %s, s[32:35], s53 offen offset:%d lds" % (vr(7 + j), 1024 * j))
        if OPT["qx"]:
            e("s_add_u32 m0, s51, %d" % st)
            e("s_mov_b32 s54, %d" % (tg * 64))
            for j in range(2):
                e("buffer_load_dwordx4 %s, s[28:31], s54 offen offset:%d lds" % (vr(10 + j), 1024 * j))

    nt = " nt" if OPT["nt_kv"] else ""
    def issue_kv(T):
        if OPT["nodma"]:
            return
        slot = (T % 3) * 24576
        s = "s[36:39]" if T % 2 == 0 else "s[40:43]"
        e("s_add_u32 m0, s49, %d" % slot)
        e("s_mov_b32 s55, %d" % ((T // 2) * 24576))
        for j in range(4):
            e("buffer_load_dwordx4 %s, %s, s55 offen offset:%d%s lds" % (vr(1 + j), s, 1024 * j, nt))
        e("s_add_u32 m0, s49, %d" % (slot + 4096))
        e("s_nop 0")
        for j in range(4, 6):
            e("buffer_load_dwordx4 %s, %s, s55 offen offset:%d%s lds" % (vr(1 + j), s, 1024 * (j - 4), nt))

    ACC, Q, S, P, RING = 160, 112, 80, 64, 32
    ds = DS()
    if OPT["touch"]:
        e("v_min_u32 v40, 59, v0")
        e("v_mul_u32_u24 v41, 0x5556, v40")
        e("v_lshrrev_b32 v41, 16, v41")
        e("v_mul_u32_u24 v42, 3, v41")
        e("v_sub_u32 v42, v40, v42")
        e("s_mul_i32 s52, s56, 80")
        e("s_mul_i32 s53, s48, 20")
        e("s_add_u32 s52, s52, s53")
        e("v_add_u32 v41, s52, v41")
        e("v_mul_u32_u24 v41, 0x3000, v41")
        e("v_lshl_add_u32 v41, v42, 7, v41")
        e("buffer_load_dword v62, v41, s[32:35], 0 offen")
        e("s_and_b32 s52, s60, 7")
        e("s_lshl_b32 s52, s52, 2")
        e("s_add_u32 s52, s52, s48")
        e("s_mul_i32 s52, s52, 5120")
        e("v_mul_u32_u24 v41, 80, v0")
        e("v_add_u32 v41, s52, v41")
        e("buffer_load_dword v63, v41, s[28:31], 0 offen")
    if OPT["noq"]:
        issue_kv(0); issue_kv(1)
    for t in range(0 if OPT["noq"] else 3):
        issue_q(t)
    for t in range(0 if OPT["noq"] else 20):
        st = (t & 3) * 20480
        per = 3 * OPT["qw"] + 2 * OPT["qx"]
        e("s_waitcnt vmcnt(%d)" % (2 * per if t <= 17 else (per if t == 18 else (0 if OPT["nodma"] else 6))))
        e("s_barrier")
        if t + 3 < 20:
            issue_q(t + 3)
        if t == 18: issue_kv(0)
        if t == 19: issue_kv(1)
        a = [12, 13, 14, 15]; xa = [16, 17]; off = st
        if (t & 3) == 3:
            for i in range(4):
                e("v_add_u32 %s, %d, %s" % (vr(26 + i), st, vr(12 + i)))
            e("v_add_u32 v30, %d, v16" % st)
            e("v_add_u32 v31, %d, v17" % st)
            a = [26, 27, 28, 29]; xa = [30, 31]; off = 0
        xi = []
        for s in range(2):
            xi.append(ds.issue("ds_read_b128 %s, %s offset:%d" % (vr(56 + 4 * s, 4), vr(xa[s]), off + 12288)))
        items = []
        for s in range(2):
            for dt in range(6):
                def rd(reg, s=s, dt=dt):
                    o = off + s * 6144 + (dt >> 1) * 128
                    return ["ds_read_b64_tr_b16 %s, %s offset:%d" % (vr(reg + 2 * tt, 2), vr(a[2 * (dt & 1) + tt]), o) for tt in range(2)]
                def mf(reg, s=s, dt=dt):
                    c = "0" if (t == 0 and s == 0) else vr(ACC + 16 * dt, 16)
                    return "%s %s, %s, %s, %s" % (MFMA, vr(ACC + 16 * dt, 16), vr(reg, 4), vr(56 + 4 * s, 4), c)
                items.append(dict(reads=rd, mfma=mf))
        if OPT["qcomp"]:
            pipeline(items, RING, 6, ds)
    stamp(1)
    e("s_nop 7"); e("s_nop 7")
    for dt in range(6):
        for j in range(8):
            e("v_cvt_pk_bf16_f32 %s, %s, %s" % (vr(Q + 8 * dt + j), vr(ACC + 16 * dt + 2 * j), vr(ACC + 16 * dt + 2 * j + 1)))
    e("s_nop 1")
    for s in range(12):
        e("v_permlane32_swap_b32 %s, %s" % (vr(Q + 4 * s), vr(Q + 4 * s + 2)))
        e("v_permlane32_swap_b32 %s, %s" % (vr(Q + 4 * s + 1), vr(Q + 4 * s + 3)))
    e("v_mov_b32 v30, 0xff800000")
    e("v_mov_b32 v31, 0")
    if OPT["prio"]:
        e("s_setprio 0")
    M, LS, AL = 30, 31, 12
    for i in range(16):
        slot = (i % 3) * 24576
        tile = i // 2
        e("s_waitcnt vmcnt(%d)" % (6 if i < 15 else 0))
        e("s_barrier")
        if i == 0: stamp(2)
        if i == 8: stamp(3)
        if i + 2 < 16:
            issue_kv(i + 2)
        base = 18 if i % 2 == 0 else 22
        a = [base + x for x in range(4)]; off = slot
        if i % 3 == 2:
            for x in range(4):
                e("v_add_u32 %s, %d, %s" % (vr(26 + x), slot, vr(base + x)))
            a = [26, 27, 28, 29]; off = 0
        if i % 2 == 0:
            items = []
            for s in range(12):
                for kt in range(2):
                    def rd(reg, s=s, kt=kt):
                        return ["ds_read_b128 %s, %s offset:%d" % (vr(reg, 4), vr(a[s & 3]), off + kt * 12288 + (s >> 2) * 128)]
                    def mf(reg, s=s, kt=kt):
                        c = "0" if s == 0 else vr(S + 16 * kt, 16)
                        return "%s %s, %s, %s, %s" % (MFMA, vr(S + 16 * kt, 16), vr(reg, 4), vr(Q + 4 * s, 4), c)
                    items.append(dict(reads=rd, mfma=mf))
            if not OPT["nocomp"]:
                pipeline(items, RING, 8, ds)
            if OPT["nocomp"] or OPT["nosm"]:
                continue
            e("s_nop 7"); e("s_nop 3")
            e("v_max3_f32 v8, %s, %s, %s" % (vr(S), vr(S + 1), vr(S + 2)))
            e("s_nop 0")
            e("v_max3_f32 v9, %s, %s, %s" % (vr(S + 16), vr(S + 17), vr(S + 18)))
            for x in range(6):
                e("v_max3_f32 v8, v8, %s, %s" % (vr(S + 3 + 2 * x), vr(S + 4 + 2 * x)))
                e("v_max3_f32 v9, v9, %s, %s" % (vr(S + 19 + 2 * x), vr(S + 20 + 2 * x)))
            e("v_max3_f32 v8, v8, %s, %s" % (vr(S + 15), vr(S + 31)))
            e("v_max3_f32 v8, v8, v9, %s" % vr(M))
            e("s_nop 0")
            e("v_mov_b32 v9, v8")
            e("s_nop 1")
            e("v_permlane32_swap_b32 v9, v8")
            e("s_nop 1")
            e("v_max_f32 v8, v8, v9")
            e("v_sub_f32 v9, %s, v8" % vr(M))
            e("v_mul_f32 v10, s59, v8")
            e("v_mul_f32 v9, s59, v9")
            e("v_mov_b32 %s, v8" % vr(M))
            e("v_exp_f32 %s, v9" % vr(AL))
            for x in range(32):
                e("v_fma_f32 %s, %s, s59, -v10" % (vr(S + x), vr(S + x)))
                if x >= 1:
                    e("v_exp_f32 %s, %s" % (vr(S + x - 1), vr(S + x - 1)))
            e("v_exp_f32 %s, %s" % (vr(S + 31), vr(S + 31)))
            e("v_pk_add_f32 v[14:15], %s, %s" % (vr(S, 2), vr(S + 2, 2)))
            e("v_pk_add_f32 v[16:17], %s, %s" % (vr(S + 4, 2), vr(S + 6, 2)))
            for x in range(4, 16):
                d = 14 if x % 2 == 0 else 16
                e("v_pk_add_f32 %s, %s, %s" % (vr(d, 2), vr(d, 2), vr(S + 2 * x, 2)))
            for x in range(16):
                e("v_cvt_pk_bf16_f32 %s, %s, %s" % (vr(P + x), vr(S + 2 * x), vr(S + 2 * x + 1)))
            e("v_pk_add_f32 v[14:15], v[14:15], v[16:17]")
            e("s_nop 0")
            e("v_add_f32 v14, v14, v15")
            e("s_nop 0")
            e("v_fma_f32 %s, %s, %s, v14" % (vr(LS), vr(LS), vr(AL)))
        else:
            items = []
            for kb in range(4):
                for dt in range(6):
                    def rd(reg, kb=kb, dt=dt):
                        o = off + kb * 6144 + (dt >> 1) * 128
                        return ["ds_read_b64_tr_b16 %s, %s offset:%d" % (vr(reg + 2 * tt, 2), vr(a[2 * (dt & 1) + tt]), o) for tt in range(2)]
                    def mf(reg, kb=kb, dt=dt):
                        c = "0" if (tile == 0 and kb == 0) else vr(ACC + 16 * dt, 16)
                        return "%s %s, %s, %s, %s" % (MFMA, vr(ACC + 16 * dt, 16), vr(reg, 4), vr(P + 4 * kb, 4), c)
                    items.append(dict(reads=rd, mfma=mf))
            def pre():
                if tile > 0:
                    for x in range(48):
                        e("v_pk_mul_f32 %s, %s, %s op_sel_hi:[1,0]" % (vr(ACC + 2 * x, 2), vr(ACC + 2 * x, 2), vr(AL, 2)))
                    e("s_nop 1")
            if OPT["nosm"]:
                pre = None
            if not OPT["nocomp"]:
                pipeline(items, RING, 8, ds, pre=pre)
    stamp(4)
    e("v_mov_b32 v9, %s" % vr(LS))
    e("v_mov_b32 v8, %s" % vr(LS))
    e("s_nop 1")
    e("v_permlane32_swap_b32 v9, v8")
    e("s_nop 1")
    e("v_add_f32 v8, v8, v9")
    e("s_nop 0")
    e("v_rcp_f32 v12, v8")
    e("v_and_b32 v1, 31, v0")
    e("v_lshrrev_b32 v2, 5, v0")
    e("v_bfe_u32 v3, v1, 1, 3")
    e("v_xor_b32 v3, v3, v2")
    e("v_lshlrev_b32 v3, 4, v3")
    e("v_lshl_add_u32 v3, v1, 7, v3")
    e("s_lshl_b32 s52, s48, 12")
    e("v_add_u32 v14, s52, v3")
    e("v_xor_b32 v15, 32, v14")
    e("v_xor_b32 v16, 64, v14")
    e("v_xor_b32 v17, 96, v14")
    e("s_nop 7")
    for x in range(48):
        e("v_pk_mul_f32 %s, %s, %s op_sel_hi:[1,0]" % (vr(ACC + 2 * x, 2), vr(ACC + 2 * x, 2), "v[12:13]"))
    T = 64
    for dt in range(6):
        for j in range(8):
            e("v_cvt_pk_bf16_f32 %s, %s, %s" % (vr(T + 8 * dt + j), vr(ACC + 16 * dt + 2 * j), vr(ACC + 16 * dt + 2 * j + 1)))
    e("s_nop 1")
    for dt in range(6):
        for ip in range(2):
            b = T + 8 * dt + 4 * ip
            e("v_permlane32_swap_b32 %s, %s" % (vr(b), vr(b + 2)))
            e("v_permlane32_swap_b32 %s, %s" % (vr(b + 1), vr(b + 3)))
    e("s_mov_b32 s53, 16384")
    e("s_mov_b32 s54, 32768")
    e("s_nop 1")
    for dt in range(6):
        so = ["0", "s53", "s54"][dt >> 1]
        for ip in range(2):
            e("buffer_store_dwordx4 %s, %s, s[44:47], %s offen%s" % (vr(T + 8 * dt + 4 * ip, 4), vr(14 + 2 * (dt & 1) + ip), so, ["", " nt", " sc1", " sc0 sc1"][OPT["ont"]]))
    if OPT["prof"]:
        e("s_waitcnt vmcnt(0)")
    stamp(5)
    stamp_flush(6, 0)
    lab("attn_exit")
    e("s_endpgm")

PART = 32 * 1024 * 1024
def k2():
    lab("oproj_kernel")
    e("s_cmp_ge_u32 s2, 256")
    e("s_cbranch_scc1 oproj_exit")
    stamp(0)
    e("s_load_dwordx2 s[4:5], s[0:1], 32")
    e("s_load_dwordx2 s[6:7], s[0:1], 72")
    e("s_load_dwordx2 s[24:25], s[0:1], 96")
    lane_decomp()
    e("s_and_b32 s52, s2, 7")
    e("s_lshr_b32 s58, s52, 2")
    e("s_and_b32 s57, s52, 3")
    e("s_lshr_b32 s53, s2, 3")
    e("s_lshr_b32 s56, s53, 2")
    e("s_and_b32 s55, s53, 3")
    e("s_lshl_b32 s52, s48, 12")
    e("v_lshlrev_b32 v1, 4, v0")
    e("v_add_u32 v1, s52, v1")
    e("s_mul_i32 s52, s48, 320")
    for j in range(5):
        e("v_add_u32 v40, s52, v0")
        if j: e("v_add_u32 v40, %d, v40" % (64 * j))
        e("v_mul_u32_u24 v41, 0xccd, v40")
        e("v_lshrrev_b32 v41, 16, v41")
        e("v_mul_u32_u24 v42, 20, v41")
        e("v_sub_u32 v42, v40, v42")
        e("v_lshlrev_b32 v42, 4, v42")
        e("v_mul_u32_u24 v41, 0x500, v41")
        e("v_add_u32 v42, v41, v42")
        if 0 < j < 4:
            e("v_subrev_u32 v42, %d, v42" % (1024 * j))
        e("v_mov_b32 %s, v42" % vr(2 + j))
    e("v_lshrrev_b32 v46, 5, v0")
    e("v_and_b32 v47, 31, v0")
    e("v_bfe_u32 v48, v0, 4, 1")
    e("v_bfe_u32 v49, v0, 2, 2")
    e("v_and_b32 v50, 3, v0")
    e("v_lshl_add_u32 v40, v46, 3, v49")
    e("v_mul_u32_u24 v40, 0x140, v40")
    e("v_lshl_add_u32 v40, v48, 5, v40")
    e("v_lshl_add_u32 v40, v50, 3, v40")
    for st in range(4):
        e("v_add_u32 %s, %d, v40" % (vr(8 + st), st * 36864 + 16384))
    e("v_bfe_u32 v41, v47, 1, 3")
    e("v_xor_b32 v41, v41, v46")
    e("v_lshlrev_b32 v41, 4, v41")
    e("v_lshl_add_u32 v41, v47, 7, v41")
    e("s_lshl_b32 s52, s48, 12")
    e("v_add_u32 v41, s52, v41")
    for s in range(4):
        e("v_xor_b32 v42, %d, v41" % (32 * s))
        for st in range(4):
            e("v_add_u32 %s, %d, v42" % (vr(12 + 4 * st + s), st * 36864))
    e("s_waitcnt lgkmcnt(0)")
    e("s_cmp_eq_u32 s58, 0")
    e("s_cselect_b32 s4, s4, s6")
    e("s_cselect_b32 s5, s5, s7")
    e("s_mul_i32 s52, s57, %d" % (1536 * 1280))
    e("s_mul_i32 s53, s55, 320")
    e("s_add_u32 s52, s52, s53")
    add64(4, 5, "s52")
    e("s_sub_u32 s53, %d, s52" % (6144 * 1280))
    srd(32, "s4", "s5", "s53")
    e("s_lshl_b32 s52, s58, 3")
    e("s_add_u32 s52, s52, s56")
    e("s_mul_i32 s52, s52, 96")
    e("s_mul_i32 s53, s57, 24")
    e("s_add_u32 s52, s52, s53")
    e("s_lshl_b32 s52, s52, 14")
    e("s_add_u32 s8, s24, s52")
    e("s_addc_u32 s9, s25, 0")
    srd(28, "s8", "s9", "%d" % (24 * 16384))
    e("s_lshl_b32 s52, s58, 3")
    e("s_add_u32 s52, s52, s56")
    e("s_lshl_b32 s52, s52, 2")
    e("s_add_u32 s52, s52, s55")
    e("s_lshl_b32 s52, s52, 2")
    e("s_add_u32 s52, s52, s57")
    e("s_mul_i32 s52, s52, 40960")
    e("s_add_u32 s52, s52, %d" % PART)
    add64(24, 25, "s52")
    srd(44, "s24", "s25", "40960")
    e("s_lshl_b32 s49, s48, 12")
    e("s_mul_i32 s50, s48, 5120")
    e("s_add_u32 s50, s50, 16384")
    def issue(kt):
        if OPT["k2nodma"]:
            return
        st = (kt & 3) * 36864
        kg = (kt & 3) if OPT["k2same"] else kt
        if OPT["k2o"]:
            e("s_add_u32 m0, s49, %d" % st)
            e("s_mov_b32 s53, %d" % (kg * 16384))
            for rep in range(OPT["k2rep"]):
              for j in range(4):
                if OPT["k2vg"]:
                    e("buffer_load_dwordx4 %s, v1, s[28:31], s53 offen offset:%d" % (vr(64 + 16 * (kt & 3) + 4 * j, 4), 1024 * j))
                else:
                    e("buffer_load_dwordx4 v1, s[28:31], s53 offen offset:%d lds" % (1024 * j))
        if OPT["k2w"]:
            e("s_add_u32 m0, s50, %d" % st)
            e("s_mov_b32 s54, %d" % (kg * 81920))
            for j in range(4):
                e("buffer_load_dwordx4 %s, s[32:35], s54 offen offset:%d lds" % (vr(2 + j), 1024 * j))
            e("s_add_u32 m0, s50, %d" % (st + 4096))
            e("s_nop 0")
            e("buffer_load_dwordx4 v6, s[32:35], s54 offen lds")
    if OPT["k2h"]:
        D = OPT["k2d"]
        e("s_cmp_eq_u32 s48, 4")
        e("s_cbranch_scc0 oproj_main")
        e("s_lshl_b32 s52, s55, 12")
        e("v_lshlrev_b32 v1, 6, v0")
        e("v_add_u32 v1, s52, v1")
        e("s_lshr_b32 s53, s2, 3")
        e("s_mul_i32 s52, s53, 2560")
        e("s_mul_i32 s53, s55, 320")
        e("s_sub_u32 s52, s52, s53")
        e("v_mul_u32_u24 v2, 40, v0")
        e("v_add_u32 v2, s52, v2")
        def touch(kt):
            if kt >= 24: return
            e("s_mov_b32 s53, %d" % (kt * 16384))
            e("s_mov_b32 s54, %d" % (kt * 81920))
            e("buffer_load_dword v3, v1, s[28:31], s53 offen")
            e("buffer_load_dword v4, v2, s[32:35], s54 offen")
        for kt in range(D):
            touch(kt)
        for kt in range(24):
            e("s_barrier")
            touch(kt + D)
        e("s_waitcnt vmcnt(0)")
        e("s_endpgm")
        lab("oproj_main")
    ACC, RING, BF = 128, 64, 32
    ds = DS()
    for kt in range(3):
        issue(kt)
    items = []
    bidx = {}
    for kt in range(24):
        st = kt & 3
        for s in range(4):
            for n5 in range(5):
                it = {}
                def rd(reg, s=s, n5=n5, st=st):
                    o = s * 5120 + n5 * 64
                    return ["ds_read_b64_tr_b16 %s, %s offset:%d" % (vr(reg + 2 * tt, 2), vr(8 + st), o + 1280 * tt) for tt in range(2)]
                def mf(reg, s=s, n5=n5, kt=kt):
                    c = "0" if (kt == 0 and s == 0) else vr(ACC + 16 * n5, 16)
                    return "%s %s, %s, %s, %s" % (MFMA, vr(ACC + 16 * n5, 16), vr(reg, 4), vr(BF + 16 * (kt & 1) + 4 * s, 4), c)
                br = []
                if s == 0 and n5 == 0:
                    def sync(kt=kt):
                        per = 4 * OPT["k2o"] * OPT["k2rep"] + 5 * OPT["k2w"]
                        if kt == 0: n = 2 * per
                        elif kt == 23: n = 0
                        else: n = per
                        e("s_waitcnt vmcnt(%d)" % n)
                        e("s_barrier")
                        if kt == 0: stamp(1)
                        if kt == 8: stamp(2)
                        if kt == 16: stamp(3)
                        if kt >= 1 and kt + 2 < 24:
                            issue(kt + 2)
                    br.append(sync)
                if n5 == 0:
                    def bread(s=s, kt=kt, st=st):
                        bidx[(kt, s)] = ds.issue("ds_read_b128 %s, %s" % (vr(BF + 16 * (kt & 1) + 4 * s, 4), vr(12 + 4 * st + s)))
                    br.append(bread)
                it["reads"] = rd; it["mfma"] = mf; it["before_read"] = br
                items.append(it)
    if OPT["k2nocomp"]:
        for it in items:
            for f in it["before_read"][:1]:
                if f.__name__ == "sync": f()
    else:
        pipeline(items, RING, 8, ds)
    stamp(4)
    e("s_nop 7"); e("s_nop 7")
    T = 32
    for n5 in range(5):
        for j in range(8):
            e("v_cvt_pk_bf16_f32 %s, %s, %s" % (vr(T + 8 * n5 + j), vr(ACC + 16 * n5 + 2 * j), vr(ACC + 16 * n5 + 2 * j + 1)))
    e("s_mul_i32 s52, s48, 10240")
    e("v_lshlrev_b32 v1, 4, v0")
    e("v_add_u32 v1, s52, v1")
    for x in range(10):
        e("s_mov_b32 s53, %d" % (1024 * x))
        e("buffer_store_dwordx4 %s, v1, s[44:47], s53 offen" % vr(T + 4 * x, 4))
    if OPT["prof"]:
        e("s_waitcnt vmcnt(0)")
    stamp(5)
    stamp_flush(6, 1)
    lab("oproj_exit")
    e("s_endpgm")

def k3():
    lab("reduce_kernel")
    e("s_cmp_ge_u32 s2, 640")
    e("s_cbranch_scc1 reduce_exit")
    e("s_load_dwordx2 s[4:5], s[0:1], 80")
    e("s_load_dwordx2 s[24:25], s[0:1], 96")
    lane_decomp()
    e("s_mul_i32 s52, s2, 0x199a")
    e("s_lshr_b32 s52, s52, 16")
    e("s_mul_i32 s53, s52, 10")
    e("s_sub_u32 s53, s2, s53")
    e("s_mul_i32 s54, s52, 163840")
    e("s_mul_i32 s55, s48, 10240")
    e("s_lshl_b32 s56, s53, 10")
    e("s_add_u32 s55, s55, s56")
    e("v_lshlrev_b32 v1, 4, v0")
    e("v_add_u32 v1, s55, v1")
    e("s_lshr_b32 s56, s52, 5")
    e("s_bfe_u32 s57, s52, 0x30002")
    e("s_and_b32 s58, s52, 3")
    e("s_mul_i32 s56, s56, 1280")
    e("s_mul_i32 s58, s58, 320")
    e("s_add_u32 s56, s56, s58")
    e("s_lshl_b32 s58, s53, 5")
    e("s_add_u32 s56, s56, s58")
    e("s_lshl_b32 s57, s57, 7")
    e("s_lshl_b32 s58, s48, 5")
    e("s_add_u32 s57, s57, s58")
    e("s_mul_i32 s57, s57, 2560")
    e("s_add_u32 s56, s56, s57")
    e("v_and_b32 v2, 31, v0")
    e("v_mul_u32_u24 v2, 0xa00, v2")
    e("v_lshrrev_b32 v3, 5, v0")
    e("v_lshl_add_u32 v2, v3, 4, v2")
    e("v_add_u32 v2, s56, v2")
    e("s_waitcnt lgkmcnt(0)")
    e("s_add_u32 s54, s54, %d" % PART)
    add64(24, 25, "s54")
    srd(28, "s24", "s25", "163840")
    srd(32, "s4", "s5", "%d" % (8 * 128 * 2560))
    for ks in range(4):
        e("s_mov_b32 s53, %d" % (ks * 40960))
        e("buffer_load_dwordx4 %s, v1, s[28:31], s53 offen" % vr(4 + 4 * ks, 4))
    for ks in range(4):
        e("s_waitcnt vmcnt(%d)" % (3 - ks))
        for j in range(4):
            src = 4 + 4 * ks + j
            if ks == 0:
                e("v_lshlrev_b32 %s, 16, %s" % (vr(32 + 2 * j), vr(src)))
                e("v_and_b32 %s, 0xffff0000, %s" % (vr(33 + 2 * j), vr(src)))
            else:
                e("v_lshlrev_b32 v24, 16, %s" % vr(src))
                e("v_and_b32 v25, 0xffff0000, %s" % vr(src))
                e("v_pk_add_f32 %s, %s, v[24:25]" % (vr(32 + 2 * j, 2), vr(32 + 2 * j, 2)))
    for j in range(4):
        e("v_cvt_pk_bf16_f32 %s, %s, %s" % (vr(40 + j), vr(32 + 2 * j), vr(33 + 2 * j)))
    e("s_nop 1")
    e("v_permlane32_swap_b32 v40, v42")
    e("v_permlane32_swap_b32 v41, v43")
    e("s_nop 1")
    e("buffer_store_dwordx4 v[40:43], v2, s[32:35], 0 offen")
    lab("reduce_exit")
    e("s_endpgm")

def desc(name, vg):
    L.append(".amdhsa_kernel %s" % name)
    acc = (vg + 3) // 4 * 4
    for s in (".amdhsa_next_free_vgpr %d" % vg, ".amdhsa_next_free_sgpr 102", ".amdhsa_accum_offset %d" % acc,
              ".amdhsa_group_segment_fixed_size 0", ".amdhsa_kernarg_size 104", ".amdhsa_user_sgpr_count 2",
              ".amdhsa_user_sgpr_kernarg_segment_ptr 1", ".amdhsa_system_sgpr_workgroup_id_x 1"):
        L.append("  " + s)
    L.append(".end_amdhsa_kernel")

ref = open(REF).read().split("\n")
hdr = []
for ln in ref:
    if ln.startswith("; @launch"):
        break
    hdr.append(ln)
L.extend(hdr)
L.append("; @launch kernel=attn_kernel grid=(512,1,1) block=(256,1,1) lds=81920")
L.append("; @launch kernel=oproj_kernel grid=(256,1,1) block=(%d,1,1) lds=147456" % (320 if OPT["k2h"] else 256))
L.append("; @launch kernel=reduce_kernel grid=(640,1,1) block=(256,1,1) lds=0")
L.append('.amdgcn_target "amdgcn-amd-amdhsa--gfx950"')
L.append(".text")
for (nm, fn) in (("attn_kernel", k1), ("oproj_kernel", k2), ("reduce_kernel", k3)):
    L.append(".globl %s" % nm)
    L.append(".p2align 8")
    L.append(".type %s,@function" % nm)
    fn()
L.append('.section .rodata,"a"')
for (nm, vg) in (("attn_kernel", 256), ("oproj_kernel", 208), ("reduce_kernel", 44)):
    L.append(".p2align 6")
    desc(nm, vg)
open(OUT, "w").write("\n".join(L) + "\n")
print("wrote", OUT, len(L), "lines")
```
